```python
import torch

def _softmax(x, axis=-1):
    return torch.softmax(x, dim=axis)
def _gelu(x):
    return torch.nn.functional.gelu(x, approximate="tanh")
def _silu(x):
    return torch.nn.functional.silu(x)
def _sigmoid(x):
    return torch.sigmoid(x)
def _layernorm(x, axis=-1, eps=1e-5):
    m = x.mean(dim=axis, keepdim=True)
    v = x.var(dim=axis, keepdim=True, unbiased=False)
    return (x - m) / torch.sqrt(v + eps)
def _scatter_add(tgt, idx, src, axis=0):
    return tgt.clone().index_add_(axis, idx, src)
def _segment_sum(src, seg, n):
    out = torch.zeros((n,) + src.shape[1:], dtype=src.dtype)
    return out.index_add_(0, seg, src)
def _pad(x, pw):
    flat = tuple(v for pair in reversed(pw) for v in pair)
    return torch.nn.functional.pad(x, flat)

kernel_name = 'recurrent_scan__gqa_block_cached__glu_gated_swiglu__decode'

def setup_inputs():

    _w = (lambda a: (lambda t: t.to(torch.bfloat16) if t.is_floating_point() else t)(torch.as_tensor(a)))
    def _A_setup():
        B, Sq, D = 1, 1, 512
        Hq, Hkv, Sk, Dh = 32, 8, 65536, 128
        assert Hq % Hkv == 0, (Hq, Hkv)
        return {
            "x": _w((lambda *s: torch.randn(*s, dtype=torch.bfloat16) * 0.4)(B, Sq, D)),
            "k_cache": _w((lambda *s: torch.randn(*s, dtype=torch.bfloat16) * 1.6)(B, Hkv, Sk, Dh)),
            "v_cache": _w((lambda *s: torch.randn(*s, dtype=torch.bfloat16) * 1.6)(B, Hkv, Sk, Dh)),
            "wq": _w((lambda *s: torch.randn(*s, dtype=torch.bfloat16) * 1.6)(D, Hq * Dh) * (D ** -0.5)),
            "wo": _w((lambda *s: torch.randn(*s, dtype=torch.bfloat16) * 1.6)(Hq * Dh, D) * ((Hq * Dh) ** -0.5)),
        }
    _A_in = _A_setup()

    def _B_setup():
        B, S, D, F = 1, 1, 512, 1792
        return {
            "x": _w((lambda *s: torch.randn(*s, dtype=torch.bfloat16) * 0.4)(B, S, D)),
            "w1": _w((lambda *s: torch.randn(*s, dtype=torch.bfloat16) * 1.6)(D, F) * (2.0 / D) ** 0.5),
            "w3": _w((lambda *s: torch.randn(*s, dtype=torch.bfloat16) * 1.6)(D, F) * (2.0 / D) ** 0.5),
            "w2": _w((lambda *s: torch.randn(*s, dtype=torch.bfloat16) * 1.6)(F, D) * (2.0 / F) ** 0.5),
        }
    _B_in = _B_setup()

    return {
        "A_x": _A_in["x"],
        "A_k_cache": _A_in["k_cache"],
        "A_v_cache": _A_in["v_cache"],
        "A_wq": _A_in["wq"],
        "A_wo": _A_in["wo"],
        "B_x": _B_in["x"],
        "B_w1": _B_in["w1"],
        "B_w3": _B_in["w3"],
        "B_w2": _B_in["w2"],
    }

def reference(A_x, A_k_cache, A_v_cache, A_wq, A_wo, B_x, B_w1, B_w3, B_w2):
    def _A_ref(x, k_cache, v_cache, wq, wo):
        B, Sq, D = x.shape
        Hq, Dh = 32, 128
        Hkv = k_cache.shape[1]
        rep = Hq // Hkv
        q = (lambda x, *d: x.permute(*d))((x @ wq).reshape(B, Sq, Hq, Dh), 0, 2, 1, 3)
        k = (lambda x, n, axis: torch.repeat_interleave(x, n, dim=axis))(k_cache, rep, axis=1)
        v = (lambda x, n, axis: torch.repeat_interleave(x, n, dim=axis))(v_cache, rep, axis=1)
        scores = torch.einsum("bhqd,bhkd->bhqk", q, k) * (Dh ** -0.5)
        p = _softmax(scores, axis=-1)
        o = torch.einsum("bhqk,bhkd->bhqd", p, v)
        return (lambda x, *d: x.permute(*d))(o, 0, 2, 1, 3).reshape(B, Sq, Hq * Dh) @ wo

    def _B_ref(x, w1, w3, w2):
        gate = torch.einsum("bsd,df->bsf", x, w1)
        up = torch.einsum("bsd,df->bsf", x, w3)
        h = _silu(gate) * up
        out = torch.einsum("bsf,fd->bsd", h, w2)
        return out

    x = A_x
    xn = _layernorm(x, axis=-1)
    s = _A_ref(xn, A_k_cache, A_v_cache, A_wq, A_wo)
    g = _silu(_B_ref(xn, B_w1, B_w3, B_w2))
    return x + s * g
```

```python
import re
TRANS = ("v_exp_f32", "v_log_f32", "v_rcp_f32", "v_rsq_f32", "v_sqrt_f32", "v_sin_f32", "v_cos_f32", "v_rcp_iflag_f32")
def regs(tok):
    tok = tok.strip()
    neg = tok.lstrip("-")
    m = re.fullmatch(r"abs\((.*)\)", neg)
    if m: neg = m.group(1)
    neg = neg.strip("|")
    m = re.fullmatch(r"([vsa])(\d+)", neg)
    if m: return {(m.group(1), int(m.group(2)))}
    m = re.fullmatch(r"([vsa])\[(\d+):(\d+)\]", neg)
    if m: return {(m.group(1), i) for i in range(int(m.group(2)), int(m.group(3))+1)}
    if neg == "vcc": return {("s", "vcc_lo"), ("s", "vcc_hi")}
    if neg in ("vcc_lo", "vcc_hi"): return {("s", neg)}
    if neg == "exec": return {("s", "exec_lo"), ("s", "exec_hi")}
    if neg in ("exec_lo", "exec_hi"): return {("s", neg)}
    if neg == "m0": return {("s", "m0")}
    return set()
class I:
    def __init__(s, text):
        s.text = text
        t = text.split(";")[0].strip()
        s.label = None; s.op = None
        s.dst = set(); s.src = set(); s.srcC = set(); s.srcAB = set(); s.data = set(); s.lanesel = set()
        s.ws = 0
        if not t: return
        if t.endswith(":"): s.label = t[:-1]; return
        if t.startswith("."): return
        p = t.split(None, 1); s.op = op = p[0]
        rest = p[1] if len(p) > 1 else ""
        rest = re.sub(r":\[([^\]]*)\]", lambda m: ":[" + m.group(1).replace(",", "_") + "]" if "," in m.group(1) else m.group(0), rest)
        ops = [o.strip() for o in rest.split(",")] if rest else []
        mods = ""
        if ops:
            q = ops[-1].split(None, 1); ops[-1] = q[0]; mods = q[1] if len(q) > 1 else ""
        s.ops = ops; s.mods = mods
        s.ws = 1
        if op == "s_nop": s.ws = int(ops[0], 0) + 1
        base = re.sub(r"_(e32|e64|dpp|sdwa)$", "", op); s.base = base
        s.mfma = op.startswith("v_mfma")
        s.valu = op.startswith("v_") and not s.mfma
        s.trans = base in TRANS
        s.dpp = op.endswith("_dpp") or "row_" in mods or "quad_perm" in mods or "wave_" in mods
        s.perml = base.startswith("v_permlane")
        s.dot = base.startswith("v_dot")
        s.vmem = op.startswith(("buffer_", "global_", "flat_"))
        s.ds = op.startswith("ds_")
        s.salu = op.startswith("s_")
        s.rdlane = base in ("v_readlane_b32", "v_readfirstlane_b32", "v_writelane_b32")
        s.branch = op.startswith(("s_branch", "s_cbranch"))
        s.end = op in ("s_endpgm", "s_branch", "s_setpc_b64")
        R = [regs(o) for o in ops]
        if s.mfma:
            s.dst = R[0]; s.srcAB = R[1] | R[2]; s.srcC = R[3]; s.src = s.srcAB | s.srcC
            s.passes = 8 if "32x32" in op else 4
        elif s.valu:
            s.dst = set(R[0]); s.src = set().union(*R[1:]) if len(R) > 1 else set()
            if s.perml and "swap" in base: s.dst = R[0] | R[1]; s.src = R[0] | R[1]
            if base in ("v_fmac_f32", "v_dot2c_f32_bf16", "v_writelane_b32"): s.src |= R[0]
            s.dppsrc = R[1] if s.dpp else set()
            if base.startswith(("v_add_co", "v_sub_co", "v_addc_co", "v_subb_co")): s.dst = R[0] | R[1]; s.src = set().union(*R[2:])
            if base == "v_cndmask_b32" and len(ops) == 3: s.src |= regs("vcc")
            if base.startswith("v_cmpx"): s.dst |= regs("exec")
            if base in ("v_readlane_b32", "v_writelane_b32"): s.lanesel = R[2]
            if s.dot: s.srcC = R[3] if len(R) > 3 else R[0]; s.srcAB = R[1] | R[2]
        elif s.vmem:
            st = "store" in op or ("atomic" in op)
            lds = " lds" in (" " + mods)
            if op.startswith("buffer_"):
                if op.startswith(("buffer_inv", "buffer_wbl2")): pass
                elif lds: s.src = set().union(*R)
                elif "store" in op: s.data = R[0]; s.src = set().union(*R)
                elif "atomic" in op:
                    s.data = R[0]; s.src = set().union(*R)
                    if "sc0" in mods: s.dst = R[0]
                else: s.dst = R[0]; s.src = set().union(*R[1:])
            else:
                if "store" in op: s.data = R[1]; s.src = set().union(*R)
                elif "atomic" in op:
                    if "sc0" in mods: s.dst = R[0]; s.src = set().union(*R[1:])
                    else: s.src = set().union(*R)
                else: s.dst = R[0]; s.src = set().union(*R[1:])
            s.wide = ("x3" in op or "x4" in op) and "store" in op
        elif s.ds:
            if "read" in op or "permute" in op or "swizzle" in op or "rtn" in op: s.dst = R[0]; s.src = set().union(*R[1:])
            else: s.src = set().union(*R)
        elif s.salu:
            if op.startswith(("s_cmp", "s_waitcnt", "s_cbranch", "s_branch", "s_barrier", "s_sleep", "s_nop", "s_endpgm", "s_setprio", "s_setpc", "s_bitcmp")):
                s.src = set().union(*R) if R else set()
            else:
                s.dst = R[0] if R else set(); s.src = set().union(*R[1:]) if len(R) > 1 else set()
                if "saveexec" in op: s.dst = s.dst | regs("exec")
def need(p, c):
    n = 0
    V = lambda x: {r for r in x if r[0] in "va"}
    S = lambda x: {r for r in x if r[0] == "s"}
    EX = regs("exec")
    if p.valu:
        pv, ps = V(p.dst), S(p.dst)
        if pv:
            if c.valu and c.dpp and pv & V(c.dppsrc): n = max(n, 2)
            if c.valu and c.perml and pv & V(c.src): n = max(n, 2)
            if c.valu and c.rdlane and pv & V(c.src): n = max(n, 1)
            if c.mfma and not p.dot and pv & c.src: n = max(n, 2)
            if p.trans and (c.valu and not c.trans or c.mfma) and pv & V(c.src): n = max(n, 1)
            if p.trans and (c.vmem or c.ds) and pv & V(c.src): n = max(n, 1)
            if p.dot:
                if c.valu and c.dot and c.base == p.base:
                    if pv & c.srcAB: n = max(n, 3)
                elif pv & (V(c.src) | V(c.dst)): n = max(n, 3)
        if ps:
            if c.vmem and ps & S(c.src): n = max(n, 5)
            if c.valu and ps & c.lanesel: n = max(n, 4)
            if (c.valu or c.mfma) and ps & S(c.src): n = max(n, 2)
            if c.salu and ps & S(c.src): n = max(n, 1)
            if ps & EX:
                if c.valu and c.dpp: n = max(n, 5)
                if c.valu and (c.rdlane or c.perml): n = max(n, 4)
                if c.mfma: n = max(n, 4)
    if p.vmem and getattr(p, "wide", False) and p.data & V(c.dst):
        n = max(n, 2 if c.valu else 1)
    if p.salu and ("s", "m0") in p.dst and c.vmem and " lds" in (" " + c.mods): n = max(n, 1)
    if p.mfma:
        t = {4: (6, 8, 3), 8: (10, 12, 7)}[p.passes]
        if c.mfma:
            if p.dst & c.srcAB: n = max(n, t[1])
            if p.dst & c.srcC and not (c.srcC == p.dst and c.passes == p.passes): n = max(n, t[0])
            if p.dst & c.dst and not (c.srcC == p.dst): n = max(n, t[0])
        elif (c.valu or c.vmem or c.ds) and p.dst & (V(c.src) | V(c.dst)): n = max(n, t[1])
        if c.valu and p.srcC & V(c.dst): n = max(n, t[2])
    return n
def fix(lines, verbose=False):
    ins = [I(l) for l in lines]
    total = 0; start = 0
    while True:
        lab = {x.label: i for i, x in enumerate(ins) if x.label}
        tgt = {}
        for i, x in enumerate(ins):
            if x.op and x.branch and x.ops[0] in lab: tgt.setdefault(lab[x.ops[0]], []).append(i)
        def preds(i):
            out = []
            if i > 0 and not (ins[i-1].op and ins[i-1].end): out.append(i-1)
            out += tgt.get(i, [])
            return out
        bad = None
        for i in range(start, len(ins)):
            c = ins[i]
            if not c.op or c.op == "s_nop": continue
            deficit = 0
            stack = [(j, 0) for j in preds(i)]; seen = {}
            while stack:
                j, d = stack.pop()
                if d >= 20 or seen.get(j, 99) <= d: continue
                seen[j] = d
                p = ins[j]
                if p.op:
                    r = need(p, c)
                    if r > d: deficit = max(deficit, r - d)
                stack += [(k, d + p.ws) for k in preds(j)]
            if deficit: bad = (i, deficit); break
        if not bad: break
        i, d = bad
        if verbose: print("nop %d before: %s" % (d, ins[i].text))
        ins.insert(i, I("s_nop %d" % (d-1))); total += d; start = i
    return [x.text for x in ins], total
```

```python
import sys, struct
import hz
HDR = open('recurrent_scan__gqa_block_cached__glu_gated_swiglu__decode.s.ref').read().split('; Override')[0]
KN = "recurrent_scan__gqa_block_cached__glu_gated_swiglu__decode_kernel"

WS_EPOCH = 0
WS_Q   = 65536
WS_F1  = 131072
WS_P1M = 262144
ST = 2176
WS_P1O = 393216
WS_P2  = WS_P1O + 256*ST
WS_PF  = WS_P2 + 8*128*256
WS_PR  = WS_PF + 8*32*256
WS_SIZE = WS_PR + 8*32*128
WS_STAMP = 3 << 20
OOB = 0x7f000000
L_Q = 0; L_OW = 1024; OW_W = 2176; OW_H = 544; L_ML = L_OW + 4*OW_W; L_G = L_ML + 128; L_FLAG = L_G + 256
L_CNT = L_FLAG + 4; L_MODE = L_FLAG + 8; L_CNT2 = L_FLAG + 12; L_LOC = L_FLAG + 16; L_RDY = L_FLAG + 20; L_WF = L_FLAG + 24; L_WT = L_G; L_SC = L_FLAG + 32; LDS_BYTES = L_SC + 16384 + 256
L_A2 = L_SC; A2S = 528
LOG2E = 0x3fb8aa3b; SCALE = 0x3db504f3; EPS = 0x3727c5ac
TIMEOUT = 1 << 18
DOC = """;
;"""

def gen(stamp=0, perm=0, amp=0, noloc=0, D0=5, LV=(5, 6), DLs="x77aagggg", DL7=16, r1=11, bo=-2, pk0=3, pk1=22, nth=4, slb=8, slq=1, slf=64, slp=0, sl1=0, lt=4, bpo=1, wpos=0, ff=1, em=1, slm=0, two=4, pe=1):
    lag = 3; STEP16 = 32768
    NM = ("A1", "A2", "A3", "A4", "B1", "B2", "B3", "B4")
    DLv = {n: int(c, 36) for n, c in zip(NM, str(DLs)[-8:])}
    DMAX = max(list(LV) + list(DLv.values()) + [DL7]); assert DMAX <= 8*lag - 4
    L = []
    def A(s):
        for x in s.split("\n"): L.append(x)
    def v(a, n=1): return "v%d" % a if n == 1 else "v[%d:%d]" % (a, a+n-1)
    def s_(a, n=1): return "s%d" % a if n == 1 else "s[%d:%d]" % (a, a+n-1)
    DPP = " row_mask:0xf bank_mask:0xf"
    sX, sK, sV, sWQ, sWO, sW1, sW3, sW2, sOUT, sWS = 4, 6, 8, 10, 12, 16, 18, 20, 22, 26
    sWave, sG = 3, 40
    rA, rB, rW = 28, 32, 36
    sPL, sPH, sTag, sTO, sMask, sHi = 42, 43, 44, 45, 46, 59
    def srd(r, p, size):
        A("s_mov_b32 s%d, s%d\ns_and_b32 s%d, s%d, 0xffff\ns_mov_b32 s%d, %s\ns_mov_b32 s%d, 0x20000" % (r, p, r+1, p+1, r+2, size, r+3))
    def STAMP(slot):
        if stamp == 1: A("s_memrealtime s[14:15]\ns_waitcnt lgkmcnt(0)\ns_mov_b32 s%d, s14" % (70+slot))
    def STAMP_OUT(vt):
        if stamp != 1: return
        A("s_mov_b64 exec, -1\ns_lshl_b32 s14, s2, 3\ns_add_u32 s14, s14, s%d\ns_lshl_b32 s14, s14, 6\ns_add_u32 s14, s14, %d" % (sWave, WS_STAMP))
        for i in range(16): A("v_mov_b32 v%d, s%d" % (vt+i, 70+i))
        A("v_mov_b32 v%d, s14\ns_mov_b64 exec, 1" % (vt+16))
        for i in range(4): A("global_store_dwordx4 v%d, %s, s[26:27] offset:%d" % (vt+16, v(vt+4*i, 4), 16*i))
    STEP = {0: "quad_perm:[1,0,3,2]", 1: "quad_perm:[2,3,0,1]", 2: "row_ror:4", 3: "row_ror:8"}
    def inrow(op, x, bits):
        for b in bits: A("%s_dpp %s, %s, %s %s%s" % (op, v(x), v(x), v(x), STEP[b], DPP))
    def rows(op, x, t):
        A("v_mov_b32 %s, %s\nv_permlane16_swap_b32 %s, %s\n%s %s, %s, %s" % (v(t), v(x), v(x), v(t), op, v(x), v(x), v(t)))
        A("v_mov_b32 %s, %s\nv_permlane32_swap_b32 %s, %s\n%s %s, %s, %s" % (v(t), v(x), v(x), v(t), op, v(x), v(x), v(t)))
    def allred(op, x, t, bits): inrow(op, x, bits); rows(op, x, t)
    def reduce8(a, bits):
        for e in range(4): A("v_permlane32_swap_b32 %s, %s" % (v(a+e), v(a+e+4)))
        for e in range(4): A("v_add_f32 %s, %s, %s" % (v(a+e), v(a+e), v(a+e+4)))
        for e in range(2): A("v_permlane16_swap_b32 %s, %s" % (v(a+e), v(a+e+2)))
        for e in range(2): A("v_add_f32 %s, %s, %s" % (v(a+e), v(a+e), v(a+e+2)))
        for b in bits:
            for e in range(2): A("v_add_f32_dpp %s, %s, %s %s%s" % (v(a+e), v(a+e), v(a+e), STEP[b], DPP))
    def quads(a):
        reduce8(a, (3,))
        A("v_mov_b32 %s, %s\nv_mov_b32 %s, %s" % (v(a+2), v(a), v(a+3), v(a+1)))
        A("v_permlane16_swap_b32 %s, %s\nv_permlane16_swap_b32 %s, %s" % (v(a), v(a+2), v(a+1), v(a+3)))
    def reduce4(a):
        A("v_permlane32_swap_b32 %s, %s\nv_permlane32_swap_b32 %s, %s" % (v(a), v(a+2), v(a+1), v(a+3)))
        A("v_add_f32 %s, %s, %s\nv_add_f32 %s, %s, %s" % (v(a), v(a), v(a+2), v(a+1), v(a+1), v(a+3)))
        A("v_permlane16_swap_b32 %s, %s\nv_add_f32 %s, %s, %s" % (v(a), v(a+1), v(a), v(a), v(a+1)))
        inrow("v_add_f32", a, (0, 1, 2, 3))
    def rb(d, x): A("v_cvt_pk_bf16_f32 %s, 0, %s" % (v(d), v(x)))
    def silu(x, t):
        A("v_mul_f32 %s, 0x%x, %s\nv_exp_f32 %s, %s\nv_add_f32 %s, 1.0, %s\nv_rcp_f32 %s, %s\nv_mul_f32 %s, %s, %s" % (v(t), LOG2E | 0x80000000, v(x), v(t), v(t), v(t), v(t), v(t), v(t), v(x), v(x), v(t)))
        rb(x, x)
    def poll(name, loads, check, sleep=0):
        A("s_mov_b32 s%d, %d\nL_poll%s:" % (sTO, TIMEOUT, name))
        for x in loads: A(x)
        A("s_sub_u32 s%d, s%d, 1\ns_cbranch_scc1 L_got%s\ns_waitcnt vmcnt(0)" % (sTO, sTO, name))
        check()
        if sleep: A("s_and_b64 exec, vcc, vcc\ns_cbranch_scc0 L_got%s\ns_sleep %d\ns_branch L_poll%s" % (name, sleep, name))
        else: A("s_and_b64 exec, vcc, vcc\ns_cbranch_scc1 L_poll%s" % name)
        A("L_got%s:\ns_mov_b64 exec, -1\ns_waitcnt vmcnt(0)" % name)
    def chk_tags(regs, t, low):
        def f():
            r = list(regs); n = len(r)//2
            for i in range(n): A("v_bitop3_b32 %s, %s, %s, s%d bitop3:0x7e" % (v(t+i), v(r[2*i]), v(r[2*i+1]), sTag))
            cur = list(range(t, t+n))
            while len(cur) > 1:
                nxt = []
                while cur:
                    if len(cur) >= 3: A("v_or3_b32 %s, %s, %s, %s" % (v(cur[0]), v(cur[0]), v(cur[1]), v(cur[2]))); nxt.append(cur[0]); cur = cur[3:]
                    elif len(cur) == 2: A("v_or_b32 %s, %s, %s" % (v(cur[0]), v(cur[0]), v(cur[1]))); nxt.append(cur[0]); cur = []
                    else: nxt.append(cur[0]); cur = []
                cur = nxt
            if low: A("v_and_b32 %s, 0x3ff, %s" % (v(t), v(t)))
            A("v_cmp_ne_u32 vcc, 0, %s" % v(t))
        return f
    def tagw(x, vt): A("v_bfi_b32 %s, s%d, %s, %s" % (v(x), sHi, v(x), v(vt)))
    def strip(x): A("v_and_b32 %s, s%d, %s" % (v(x), sHi, v(x)))
    def ldswait(name, off, n, va, vt, sleep=0):
        A("s_mov_b32 s%d, %d\nL_%s:\nds_read_b32 %s, %s offset:%d\ns_sub_u32 s%d, s%d, 1\ns_cbranch_scc1 L_%sgo\ns_waitcnt lgkmcnt(0)" % (sTO, 16*TIMEOUT, name, v(vt), v(va), off, sTO, sTO, name))
        A("v_cmp_gt_u32 vcc, %d, %s\ns_cbranch_vccnz L_%s\nL_%sgo:" % (n, v(vt), name, name))
    def pub64(name, a, vaddr, so, sloc):
        A("s_mov_b32 exec_lo, 0xff\ns_mov_b32 exec_hi, 0xff\ns_cmp_eq_u32 s%d, 1\ns_cbranch_scc1 L_pl%s" % (sloc, name))
        A("buffer_store_dwordx4 %s, %s, %s, s%d offen sc1\ns_branch L_pd%s\nL_pl%s:" % (v(a, 4), v(vaddr), s_(rW, 4), so, name, name))
        A("buffer_store_dwordx4 %s, %s, %s, s%d offen\nL_pd%s:\ns_mov_b64 exec, -1" % (v(a, 4), v(vaddr), s_(rW, 4), so, name))
    def consts():
        A("s_lshr_b32 s%d, s2, 5\ns_mov_b32 s%d, 0x05040100\ns_mov_b32 s%d, 0x07060302" % (sG, sPL, sPH))
        A("s_mov_b32 s%d, 0x000f000f\ns_mov_b32 s%d, 0x000f000f\ns_mov_b32 s%d, 0xfffffc00" % (sMask, sMask+1, sHi))
    def newtag(): A("s_mul_i32 s%d, s%d, 1664525\ns_add_u32 s%d, s%d, 1013904223" % (sTag, sTag, sTag, sTag))

    A(HDR + "; @launch grid=(256,1,1) block=(320,1,1) lds=%d" % LDS_BYTES)
    A(DOC)
    A('.amdgcn_target "amdgcn-amd-amdhsa--gfx950"\n.text\n.globl %s\n.p2align 8\n.type %s,@function\n%s:' % (KN, KN, KN))
    A("s_cmp_ge_u32 s2, 256\ns_cbranch_scc1 L_exit")
    if perm: A("s_lshl_b32 s3, s2, %d\ns_lshr_b32 s2, s2, %d\ns_or_b32 s2, s2, s3\ns_and_b32 s2, s2, 255\ns_xor_b32 s2, s2, 0x5b" % (perm, 8-perm))
    A("s_load_dwordx2 s[28:29], s[0:1], 8\ns_load_dwordx16 s[4:19], s[0:1], 0\ns_load_dwordx8 s[20:27], s[0:1], 64")
    A("v_lshrrev_b32 v1, 6, v0\nv_and_b32 v0, 63, v0\nv_readfirstlane_b32 s%d, v1\ns_lshr_b32 s%d, s2, 5" % (sWave, sG))
    if stamp == 1:
        for i in range(16): A("s_mov_b32 s%d, 0" % (70+i))
        A("s_waitcnt lgkmcnt(0)"); STAMP(0)
    if amp: A("s_memrealtime s[70:71]")
    A("s_cmp_eq_u32 s%d, 0\ns_cbranch_scc1 L_service" % sWave)

    vK, vV, vT0 = 1, 2, 3
    vNM, vL, vM, vMd, vMx, vT1, vC, vXo, vCol, vTg, vSc = 4, 5, 6, 7, 8, 9, 10, 12, 13, 14, 15
    vQ = 16; vP = 24; vS = 28; vT = 44; vO = 76
    RG = [108 + 32*u for u in range(4)]
    vAo, vAm, vRo, vRm, vPo, vW, vML, vZ, vOne, vKb, vLs = 236, 237, 238, 239, 240, 241, 244, 248, 249, 250, 251
    sSW, sN0, sN1, sIt, sLog, sScale, sMode, sPo, sPm, sB0, sWo = 48, 49, 50, 51, 52, 53, 58, 60, 61, 62, 64
    A("v_lshlrev_b32 v3, 9, v0\nv_lshlrev_b32 v5, 6, v0\nv_lshrrev_b32 v4, 4, v0\nv_and_b32 v6, 1, v0")
    A("s_xor_b32 s%d, s2, s%d\ns_and_b32 s%d, s%d, 7\ns_lshl3_add_u32 s%d, s%d, s%d" % (sN0, sG, sN0, sN0, sN0, sG, sN0))
    A("v_and_b32 v3, 0x400, v3\nv_and_b32 v5, 0x300, v5\nv_lshl_add_u32 v6, v4, 1, v6")
    A("s_bfe_u32 s%d, s2, 0x10004\ns_lshl1_add_u32 s%d, s%d, s%d\ns_lshl_b32 s%d, s%d, 8" % (sN1, sN0, sN0, sN1, sN0, sN0))
    A("v_lshlrev_b32 v6, 4, v6\nv_or3_b32 v%d, v3, v5, v6" % vK)
    A("s_bfe_u32 s%d, s2, 0x10003\ns_lshl2_add_u32 s%d, s%d, s%d\ns_add_u32 s%d, s%d, s%d\ns_sub_u32 s%d, s%d, 1\ns_lshl_b32 s%d, s%d, 12" % (sN1, sN1, sN1, sWave, sN0, sN0, sN1, sN0, sN0, sN0, sN0))
    A("v_add_u32 v%d, 128, v%d\ns_mov_b32 s30, 0x8000000\ns_mov_b32 s31, 0x20000\ns_waitcnt lgkmcnt(0)" % (vKb, vK))
    def ld(ring, j):
        A("buffer_load_dwordx4 %s, %s, %s, s%d offen offset:%d nt" % (v(ring+4*j, 4), v(vKb if j & 1 else vK), s_(rA, 4), sN0 if j < 4 else sN1, ((j >> 1) & 1)*2048))
    def adv(): A("s_add_u32 s%d, s%d, %d\ns_add_u32 s%d, s%d, %d" % (sN0, sN0, 2*STEP16, sN1, sN1, 2*STEP16))
    n = 0
    for ring in RG:
        for j in range(8):
            if n >= D0: A("s_waitcnt vmcnt(%d)" % (D0-1))
            ld(ring, j); n += 1
            if n == 4:
                consts()
                A("s_sub_u32 s%d, s%d, 1\ns_add_u32 s%d, s%d, %d\ns_mov_b32 s%d, s%d" % (sSW, sWave, sN1, sN0, STEP16, sB0, sN0))
                A("v_and_b32 v5, 15, v0\nv_lshlrev_b32 v6, 4, v5\nv_lshl_add_u32 v%d, v4, 8, v6" % vV)
            if n == D0:
                A("; set-up that is not needed for the first loads")
                A("s_load_dword s%d, s[26:27], %d\ns_barrier" % (sTag, WS_EPOCH))
                A("v_mul_u32_u24 v%d, %d, v5\nv_lshl_add_u32 v%d, v4, 7, v%d\ns_mul_i32 s55, s%d, %d\nv_add_u32 v%d, s55, v%d" % (vAo, OW_H, vAo, vAo, sSW, OW_W, vAo, vAo))
                A("s_lshl_b32 s55, s%d, 5\nv_lshl_add_u32 v%d, v0, 3, s55" % (sSW, vAm))
                A("s_lshl_b32 s55, s%d, 3\nv_mov_b32 v%d, s55\nv_and_b32 v%d, 31, v0\nv_lshlrev_b32 v%d, 4, v%d" % (sSW, vRm, vPo, vPo, vPo))
                A("s_mul_i32 s56, s%d, %d\nv_add_u32 v%d, s56, v%d" % (sSW, OW_H, vRo, vPo))
                A("s_mul_i32 s%d, s2, %d\ns_lshl_b32 s56, s%d, 9\ns_add_u32 s%d, s%d, s56\ns_add_u32 s%d, s%d, %d" % (sPo, ST, sSW, sPo, sPo, sPo, sPo, WS_P1O))
                A("s_lshl2_add_u32 s%d, s2, s%d\ns_lshl_b32 s%d, s%d, 7\ns_add_u32 s%d, s%d, %d" % (sPm, sSW, sPm, sPm, sPm, sPm, WS_P1M))
                A("v_bfe_u32 v5, v0, 2, 1\nv_lshl_add_u32 v6, v4, 1, v5\nv_lshlrev_b32 v6, 4, v6\nv_and_b32 v5, 3, v0\nv_lshl_add_u32 v%d, v5, 8, v6" % vT1)
                A("s_and_b32 s54, s2, 7\ns_bfe_u32 s55, s2, 0x40003\ns_lshl4_add_u32 s55, s54, s55\ns_lshl_b32 s55, s55, 2\nv_add_u32 v5, s55, v4\nv_lshlrev_b32 v%d, 1, v5" % vCol)
                srd(rW, sX, 1024)
                A("buffer_load_ushort %s, v%d, %s, 0 offen" % (v(vXo), vCol, s_(rW, 4)))
                A("v_lshrrev_b32 v5, 3, v0\nv_and_b32 v6, 7, v0\nv_lshlrev_b32 v6, 4, v6\nv_lshl_add_u32 v%d, v5, 10, v6" % vW)
                A("s_lshr_b32 s55, s2, 3\ns_lshl2_add_u32 s55, s55, s%d\ns_lshl_b32 s55, s55, 15\ns_lshl_b32 s54, s54, 7\ns_add_u32 s%d, s55, s54" % (sSW, sWo))
                for i in range(1, 4): A("s_add_u32 s%d, s%d, %d" % (sWo+i, sWo, 8192*i))
                srd(rB, sWO, "0x400000")
                for i in range(32): A("v_mov_b32 %s, 0" % v(vO+i))
                A("v_mov_b32 %s, 0\nv_mov_b32 %s, 0xf149f2ca" % (v(vL), v(vM)))
                A("s_mov_b32 s%d, 0x%x\ns_mov_b32 s%d, 0x%x" % (sLog, LOG2E, sScale, SCALE))
                srd(rW, sWS, WS_SIZE)
                A("s_lshl_b32 s55, s%d, 12\nv_lshl_add_u32 v%d, v0, 2, s55" % (sSW, vLs))
                A("v_mov_b32 v%d, 0\nv_mov_b32 v%d, 1\ns_mov_b32 s%d, 1" % (vZ, vOne, sMode))
        adv()
    STAMP(1)
    ldswait("qwait", L_FLAG, 1, vZ, vMx)
    A("ds_read_b128 %s, %s offset:%d\nds_read_b128 %s, %s offset:%d" % (v(vQ, 4), v(vT1), L_Q, v(vQ+4, 4), v(vT1), L_Q+128))
    A("s_mov_b32 s%d, 0\ns_waitcnt vmcnt(24) lgkmcnt(0)" % sIt)
    newtag()
    A("v_mov_b32 %s, s%d\nv_mov_b32 %s, s%d\nv_mov_b32 %s, s%d" % (v(vTg), sTag, v(vML+2), sTag, v(vML+3), sTag))
    STAMP(2)
    vWo = 108
    def wo_loads():
        for i in range(4): A("buffer_load_dwordx4 %s, v%d, %s, s%d offen nt" % (v(vWo+4*i, 4), vW, s_(rB, 4), sWo+i))
    def burst(ring, js, d):
        for j in js:
            A("s_waitcnt vmcnt(%d)" % (d-1)); ld(ring, j)
    def issue(ring, js, name, late):
        key = name[-2:]
        if late:
            A("s_cmp_ge_u32 s%d, 6\ns_cbranch_scc0 L_e%s" % (sIt, name))
            if NM.index(key) < 2*(4-lag) and DL7 != DLv[key]:
                A("s_cmp_eq_u32 s%d, 7\ns_cbranch_scc0 L_7%s" % (sIt, name))
                burst(ring, js, DL7); A("s_branch L_f%s\nL_7%s:" % (name, name))
            burst(ring, js, DLv[key]); A("s_branch L_f%s\nL_e%s:" % (name, name))
        A("s_cmp_ge_u32 s%d, 2\ns_cbranch_scc1 L_m%s" % (sMode, name))
        burst(ring, js, LV[0]); A("s_branch L_f%s\nL_m%s:" % (name, name))
        burst(ring, js, LV[1]); A("L_f%s:" % name)
    def group(ring, js, name, lastwait):
        A("s_cmp_eq_u32 s%d, 7" % sIt)
        if lastwait < DMAX: A("s_cbranch_scc0 L_x%s\ns_waitcnt vmcnt(%d)\ns_branch L_r%s\nL_x%s:" % (name, lastwait, name, name))
        else: A("s_cbranch_scc1 L_r%s" % name)
        issue(ring, js, name, 1)
        A("L_r%s:" % name)
        if DMAX <= lastwait < 63: A("s_waitcnt vmcnt(%d)" % lastwait)
    def count(off): A("s_mov_b64 exec, 1\nds_add_u32 v%d, v%d offset:%d\ns_mov_b64 exec, -1" % (vZ, vOne, off))
    def tick(): count(L_CNT); A("ds_read_b32 v%d, v%d offset:%d" % (vMd, vZ, L_MODE))
    def qk(Kr, gs):
        for g in gs: A("v_mfma_f32_16x16x32_bf16 %s, %s, %s, 0" % (v(vS+4*g, 4), v(Kr+8*g, 4), v(vQ, 4)))
        for g in gs: A("v_mfma_f32_16x16x32_bf16 %s, %s, %s, %s" % (v(vS+4*g, 4), v(Kr+8*g+4, 4), v(vQ+4, 4), v(vS+4*g, 4)))
    def perms(Vr, u):
        for r in range(4):
            A("v_perm_b32 %s, %s, %s, s%d" % (v(vT+4*(2*r)+u), v(Vr+4*(2*u+1)+r), v(Vr+4*(2*u)+r), sPL))
            A("v_perm_b32 %s, %s, %s, s%d" % (v(vT+4*(2*r+1)+u), v(Vr+4*(2*u+1)+r), v(Vr+4*(2*u)+r), sPH))
    def dppsum(gs):
        for g in gs:
            for a in range(2):
                A("v_add_f32_dpp %s, %s, %s %s:4 row_mask:0xf bank_mask:0x%x" % (v(vC+a), v(vS+4*g+2*a+1-(g & 1)), v(vS+4*g+2*a+(g & 1)), "row_shr" if g & 1 else "row_shl", 1 << g))
    def pv():
        for j in range(8): A("v_mfma_f32_16x16x32_bf16 %s, %s, %s, %s" % (v(vO+4*j, 4), v(vT+4*j, 4), v(vP, 4), v(vO+4*j, 4)))
    A("L_loopk:")
    A("s_cmp_lg_u32 s%d, 3\ns_cbranch_scc1 L_nsw" % sIt)
    A("s_mov_b32 s%d, s%d\ns_and_b32 s%d, s%d, 0xffff\nv_mov_b32 v%d, v%d\nv_add_u32 v%d, 1024, v%d\ns_mov_b32 s%d, s%d\ns_add_u32 s%d, s%d, %d\nL_nsw:" % (rA, sV, rA+1, sV+1, vK, vV, vKb, vV, sN0, sB0, sN1, sB0, STEP16))
    for u in range(4):
        R = RG[u]
        qk(R, (0, 1)); tick()
        if u >= lag: A("s_cmp_eq_u32 s%d, 3\ns_cbranch_scc1 L_ks%da" % (sIt, u))
        issue(R, range(4), "K"+NM[2*u], 0)
        if u >= lag: A("L_ks%da:" % u)
        qk(R, (2, 3)); dppsum((0, 1))
        A("s_waitcnt lgkmcnt(0)\nv_readfirstlane_b32 s%d, v%d" % (sMode, vMd))
        if u >= lag: A("s_cmp_eq_u32 s%d, 3\ns_cbranch_scc1 L_ks%db" % (sIt, u))
        issue(R, range(4, 8), "K"+NM[2*u+1], 0)
        adv()
        if u >= lag: A("L_ks%db:" % u)
        dppsum((2, 3))
        for a in range(2): rb(vC+a, vC+a)
        for a in range(2): A("v_mul_f32 %s, s%d, %s" % (v(vC+a), sScale, v(vC+a)))
        A("v_max3_f32 %s, %s, %s, %s\nv_cvt_pk_bf16_f32 %s, %s, %s" % (v(vM), v(vM), v(vC), v(vC+1), v(vT0), v(vC), v(vC+1)))
        A("ds_write_b32 v%d, %s offset:%d" % (vLs, v(vT0), L_SC + 256*u))
    A("v_add_u32 v%d, 1024, v%d\ns_add_u32 s%d, s%d, 1\ns_cmp_lt_u32 s%d, 4\ns_cbranch_scc1 L_loopk" % (vLs, vLs, sIt, sIt, sIt))
    A("v_subrev_u32 v%d, 4096, v%d\nds_read_b32 v%d, v%d offset:%d" % (vLs, vLs, vSc, vLs, L_SC))
    allred("v_max_f32", vM, vT0, (2, 3))
    rb(vM, vM)
    A("v_mul_f32 %s, 0x%x, %s" % (v(vNM), LOG2E | 0x80000000, v(vM)))
    A("; ---- V phase")
    A("L_loop:")
    for u in range(4):
        R = RG[u]; Rn = RG[(u+lag) % 4]
        A("; the four waves are kept in step while the queues are deep") if u == 0 else None
        A("s_cmp_ge_u32 s%d, 6\ns_cbranch_scc0 L_lb%d" % (sIt, u))
        if u == 3: A("s_cmp_eq_u32 s%d, 7\ns_cbranch_scc1 L_lb%d" % (sIt, u))
        A("s_barrier\nL_lb%d:" % u)
        A("s_waitcnt lgkmcnt(0)\nv_lshlrev_b32 %s, 16, v%d\nv_and_b32 %s, 0xffff0000, v%d\nv_readfirstlane_b32 s%d, v%d" % (v(vC), vSc, v(vC+1), vSc, sMode, vMd))
        A("ds_read_b32 v%d, v%d offset:%d" % (vSc, vLs, L_SC + 256*(u+1)))
        tick()
        for a in range(2): A("v_fma_f32 %s, %s, s%d, %s" % (v(vC+a), v(vC+a), sLog, v(vNM)))
        for a in range(2): A("v_exp_f32 %s, %s" % (v(vC+a), v(vC+a)))
        if u < 3: perms(R, 0)
        A("v_cvt_pk_bf16_f32 %s, %s, %s" % (v(vP), v(vC), v(vC+1)))
        A("v_add_f32 %s, %s, %s\nv_add_f32 %s, %s, %s" % (v(vL), v(vL), v(vC), v(vL), v(vL), v(vC+1)))
        for w in range(1, 4): A("v_mov_b32_dpp %s, %s row_shl:%d%s" % (v(vP+w), v(vP), 4*w, DPP))
        if u == 3:
            A("s_cmp_eq_u32 s%d, 7\ns_cbranch_scc0 L_nw" % sIt)
            allred("v_add_f32", vL, vT0, (2, 3))
            A("v_sub_f32 %s, 0, %s\ns_mov_b64 exec, 15\nds_write_b64 v%d, %s offset:%d\ns_mov_b64 exec, -1" % (v(vNM), v(vNM), vAm, v(vNM, 2), L_ML))
            for w in range(4):
                A("s_waitcnt vmcnt(%d)" % (6 - 2*w))
                if w == 3:
                    count(L_CNT2); STAMP(4)
                    if wpos == 2: wo_loads()
                perms(R, w)
            pv()
            A("s_branch L_tail\nL_nw:")
            perms(R, 0); perms(R, 1)
            issue(Rn, range(4), "V"+NM[6], 1)
            perms(R, 2); perms(R, 3)
            issue(Rn, range(4, 8), "V"+NM[7], 1)
        elif u <= 3 - lag:
            perms(R, 1)
            issue(Rn, range(4), "V"+NM[2*u], 1)
            perms(R, 2); perms(R, 3)
            issue(Rn, range(4, 8), "V"+NM[2*u+1], 1)
        else:
            perms(R, 1)
            group(Rn, range(4), "V"+NM[2*u], 24 - 8*u)
            perms(R, 2); perms(R, 3)
            group(Rn, range(4, 8), "V"+NM[2*u+1], 20 - 8*u if u < 2 else 63)
        adv(); pv()
    A("v_add_u32 v%d, 1024, v%d\ns_add_u32 s%d, s%d, 1\ns_branch L_loop" % (vLs, vLs, sIt, sIt))
    A("L_tail:")
    A("s_mov_b64 exec, %s" % s_(sMask, 2))
    for j in range(8): A("ds_write_b128 v%d, %s offset:%d" % (vAo, v(vO+4*j, 4), L_OW + 16*j))
    A("s_mov_b64 exec, -1\ns_waitcnt lgkmcnt(0)\ns_barrier")
    STAMP(5)
    if wpos == 1: wo_loads()
    for w in range(4): A("ds_read_b64 %s, v%d offset:%d" % (v(20+2*w, 2), vRm, L_ML + 32*w))
    for w in range(4): A("ds_read_b128 %s, v%d offset:%d" % (v(28+4*w, 4), vRo, L_OW + OW_W*w))
    A("s_waitcnt lgkmcnt(4)")
    A("v_max3_f32 %s, v20, v22, v24\nv_max_f32 %s, %s, v26" % (v(vML), v(vML), v(vML)))
    strip(vML)
    for w in range(4): A("v_sub_f32 %s, %s, %s" % (v(20+2*w), v(20+2*w), v(vML)))
    if not em: tagw(vML, vTg)
    for w in range(4): A("v_exp_f32 %s, %s" % (v(20+2*w), v(20+2*w)))
    A("s_waitcnt lgkmcnt(0)")
    for i in range(4): A("v_mul_f32 %s, v20, %s" % (v(48+i), v(28+i)))
    for w in range(1, 4):
        for i in range(4): A("v_fmac_f32 %s, %s, %s" % (v(48+i), v(20+2*w), v(28+4*w+i)))
    for i in range(4): tagw(48+i, vTg)
    A("s_mov_b32 exec_hi, 0\nbuffer_store_dwordx4 v[48:51], v%d, %s, s%d offen sc1" % (vPo, s_(rW, 4), sPo))
    if em: A("s_mov_b64 exec, -1")
    else:
        A("v_mul_f32 %s, v20, v21" % v(vML+1))
        for w in range(1, 4): A("v_fmac_f32 %s, %s, %s" % (v(vML+1), v(20+2*w), v(21+2*w)))
        tagw(vML+1, vTg)
        A("s_mov_b64 exec, 1\nbuffer_store_dwordx4 %s, off, %s, s%d sc1\ns_mov_b64 exec, -1" % (v(vML, 4), s_(rW, 4), sPm))
    STAMP(6)
    vWo, vPm, vG, vGm, vGo, vOm, vBp, vA2w, vA2r, vP2, vWt, vAc, vRl, vCf, vX = 108, 124, 140, 156, 160, 161, 162, 163, 164, 165, 168, 172, 180, 182, 184
    sLoc, sJ, sP2 = 57, 68, 56
    if wpos == 0: wo_loads()
    A("ds_read_b32 v20, v%d offset:%d" % (vZ, L_LOC))
    A("v_lshrrev_b32 v21, 5, v0\ns_lshl_b32 s54, s%d, 5\ns_lshl3_add_u32 s54, s%d, s54\nv_add_u32 v22, s54, v21\nv_mul_u32_u24 v22, %d, v22" % (sG, sSW, ST))
    A("s_bfe_u32 s55, s2, 0x20003\ns_lshl_b32 s54, s55, 9\ns_add_u32 s54, s54, %d\nv_add3_u32 v%d, v22, v%d, s54" % (WS_P1O, vGo, vPo))
    A("v_lshrrev_b32 v22, 1, v0\ns_lshl_b32 s54, s%d, 7\ns_add_u32 s54, s54, s55\ns_lshl_b32 s54, s54, 7\ns_add_u32 s54, s54, %d\nv_lshl_add_u32 v%d, v22, 9, s54" % (sG, WS_P1M, vOm))
    A("s_lshl_b32 s54, s%d, 6\nv_lshl_add_u32 v%d, v21, 3, s54" % (sSW, vBp))
    A("s_lshl_b32 s54, s%d, 1\nv_add_u32 v22, s54, v21\nv_mul_u32_u24 v22, %d, v22\nv_add_u32 v%d, v22, v%d" % (sSW, A2S, vA2w, vPo))
    A("v_lshrrev_b32 v22, 3, v0\ns_lshl_b32 s54, s%d, 7\nv_lshl_add_u32 v%d, v22, 4, s54" % (sSW, vA2r))
    A("v_and_b32 v22, 7, v0\nv_lshl_add_u32 v22, v22, 1, v21\nv_lshlrev_b32 v%d, 4, v22" % vP2)
    A("s_and_b32 s54, s2, 7\ns_lshl_b32 s54, s54, 15\ns_add_u32 s54, s54, %d\ns_lshr_b32 s55, s2, 3\ns_lshl2_add_u32 s55, s55, s%d\ns_lshl_b32 s55, s55, 8\ns_add_u32 s%d, s55, s54" % (WS_P2, sSW, sP2))
    A("s_mov_b32 s%d, %d\ns_mov_b32 s%d, %d\ns_mov_b32 s%d, %d" % (sJ, 2*ST, sJ+1, 4*ST, 63, 6*ST))
    for e in range(8): A("v_mov_b32 %s, 0" % v(vAc+e))
    A("s_waitcnt lgkmcnt(0)\nv_readfirstlane_b32 s%d, v20" % sLoc)
    for k in range(2):
        A("s_waitcnt vmcnt(%d)" % (2 - 2*k + ((1 if em else 2) if wpos else 0)))
        for d in range(4):
            A("v_perm_b32 %s, %s, %s, s%d" % (v(vPm+8*k+2*d), v(vWo+8*k+4+d), v(vWo+8*k+d), sPL))
            A("v_perm_b32 %s, %s, %s, s%d" % (v(vPm+8*k+2*d+1), v(vWo+8*k+4+d), v(vWo+8*k+d), sPH))
    STAMP(10)
    lm = ["buffer_load_dwordx4 %s, v%d, %s, 0 offen sc1" % (v(vGm, 4), vOm, s_(rW, 4))]
    lo = ["buffer_load_dwordx4 %s, v%d, %s, %s offen sc1" % (v(vG+4*j, 4), vGo, s_(rW, 4), ("0", "s%d" % sJ, "s%d" % (sJ+1), "s63")[j]) for j in range(4)]
    if two == 4:
        A("; the service wave watches the (m, l) of the 32 producers; a partial is first read when its (m, l) have arrived")
        sPO, sE, sR = 88, 96, 55
        A("s_lshl_b32 s65, s%d, 3\ns_mov_b32 s%d, %d\nv_lshrrev_b32 v%d, 1, v%d" % (sSW, sTO, 16*TIMEOUT, vBp, vBp))
        for j in range(4): A("s_mov_b64 %s, -1" % s_(sPO+2*j, 2))
        def ready(j):
            A("s_bitcmp1_b32 s%d, %d\ns_cselect_b32 s%d, s%d, 0\ns_bitcmp1_b32 s%d, %d\ns_cselect_b32 s%d, s%d, 0" % (sR, 2*j, sE, sPO+2*j, sR, 2*j+1, sE+1, sPO+2*j+1))
            A("s_and_b64 exec, %s, %s" % (s_(sE, 2), s_(sE, 2)))
        A("L_h:\ns_mov_b64 exec, -1\nds_read_b32 v1, v%d offset:%d\ns_sub_u32 s%d, s%d, 1\ns_cbranch_scc1 L_got1\ns_waitcnt lgkmcnt(0)\nv_readfirstlane_b32 s%d, v1\ns_lshr_b32 s%d, s%d, s65" % (vZ, L_RDY, sTO, sTO, sR, sR, sR))
        for j in range(4):
            ready(j); A("s_cbranch_scc0 L_hl%d\n%s\nL_hl%d:" % (j, lo[j], j))
        A("s_waitcnt vmcnt(0)")
        for j in range(4):
            ready(j); A("s_cbranch_scc0 L_hc%d" % j)
            chk_tags(range(vG+4*j, vG+4*j+4), vX, True)()
            A("s_andn2_b64 %s, %s, exec\ns_or_b64 %s, %s, vcc\nL_hc%d:" % (s_(sPO+2*j, 2), s_(sPO+2*j, 2), s_(sPO+2*j, 2), s_(sPO+2*j, 2), j))
        A("s_or_b64 %s, %s, %s\ns_or_b64 %s, %s, %s\ns_or_b64 %s, %s, %s" % (s_(sE, 2), s_(sPO, 2), s_(sPO+2, 2), s_(sE, 2), s_(sE, 2), s_(sPO+4, 2), s_(sE, 2), s_(sE, 2), s_(sPO+6, 2)))
        A("s_cbranch_scc1 L_h\nL_got1:\ns_mov_b64 exec, -1\ns_waitcnt vmcnt(0)")
    elif two == 2:
        A("; (m, l) were sent ahead; a producer's partial is first read when its (m, l) have arrived")
        sPM, sPO, sE, sR = 66, 88, 96, 55
        A("s_mov_b64 %s, -1\ns_mov_b32 s%d, 0\ns_lshl_b32 s65, s%d, 4\ns_mov_b32 s%d, %d" % (s_(sPM, 2), sR, sSW, sTO, TIMEOUT))
        for j in range(4): A("s_mov_b64 %s, -1" % s_(sPO+2*j, 2))
        def ready(j):
            A("s_bitcmp1_b32 s%d, %d\ns_cselect_b32 s%d, s%d, 0\ns_bitcmp1_b32 s%d, %d\ns_cselect_b32 s%d, s%d, 0" % (sR, 4*j, sE, sPO+2*j, sR, 4*j+2, sE+1, sPO+2*j+1))
            A("s_and_b64 exec, %s, %s" % (s_(sE, 2), s_(sE, 2)))
        A("L_h:")
        for j in range(4):
            ready(j); A("s_cbranch_scc0 L_hl%d\n%s\nL_hl%d:" % (j, lo[j], j))
        A("s_and_b64 exec, %s, %s\ns_cbranch_scc0 L_hm0\n%s\nL_hm0:" % (s_(sPM, 2), s_(sPM, 2), lm[0]))
        A("s_sub_u32 s%d, s%d, 1\ns_cbranch_scc1 L_got1\ns_waitcnt vmcnt(0)" % (sTO, sTO))
        for j in range(4):
            ready(j); A("s_cbranch_scc0 L_hc%d" % j)
            chk_tags(range(vG+4*j, vG+4*j+4), vX, True)()
            A("s_andn2_b64 %s, %s, exec\ns_or_b64 %s, %s, vcc\nL_hc%d:" % (s_(sPO+2*j, 2), s_(sPO+2*j, 2), s_(sPO+2*j, 2), s_(sPO+2*j, 2), j))
        A("s_and_b64 exec, %s, %s\ns_cbranch_scc0 L_hm1" % (s_(sPM, 2), s_(sPM, 2)))
        chk_tags(range(vGm, vGm+4), vX, True)()
        A("s_mov_b64 %s, vcc\ns_not_b64 %s, vcc\ns_lshr_b64 %s, %s, s65\ns_mov_b32 s%d, s%d\nL_hm1:" % (s_(sPM, 2), s_(sE, 2), s_(sE, 2), s_(sE, 2), sR, sE))
        A("s_or_b64 %s, %s, %s\ns_or_b64 %s, %s, %s\ns_or_b64 %s, %s, %s\ns_or_b64 %s, %s, %s" % (s_(sE, 2), s_(sPO, 2), s_(sPO+2, 2), s_(sE, 2), s_(sE, 2), s_(sPO+4, 2), s_(sE, 2), s_(sE, 2), s_(sPO+6, 2), s_(sE, 2), s_(sE, 2), s_(sPM, 2)))
        if slm: A("s_cbranch_scc0 L_got1\ns_sleep %d\ns_branch L_h" % slm)
        else: A("s_cbranch_scc1 L_h")
        A("L_got1:\ns_mov_b64 exec, -1\ns_waitcnt vmcnt(0)")
    elif two == 3:
        poll("M", lm, chk_tags(range(vGm, vGm+4), vX, True), slm)
        poll("1", lo, chk_tags(range(vG, vG+16), vX, True), sl1)
    elif em and two:
        A("s_lshl_b32 s55, s%d, 4\ns_bfm_b64 s[66:67], 16, s55\ns_mov_b64 exec, s[66:67]" % sSW)
        poll("M", lm, chk_tags(range(vGm, vGm+4), vX, True), slm)
        poll("1", lm + lo, chk_tags(range(vG, vG+20), vX, True), sl1)
    elif em:
        A("; (m, l) were sent ahead; the partials are read only after those of all 32 producers have arrived")
        poll("M", lm, chk_tags(range(vGm, vGm+4), vX, True), slm)
        poll("1", lo, chk_tags(range(vG, vG+16), vX, True), sl1)
    else: poll("1", lm + lo, chk_tags(range(vG, vG+20), vX, True), sl1)
    STAMP(7)
    if two == 4:
        ldswait("wf", L_WF, 1, vZ, 1)
        for j in range(4): A("ds_read_b32 %s, v%d offset:%d" % (v(vWt+j), vBp, L_WT + 8*j))
        for e in range(16): strip(vG+e)
        A("s_waitcnt lgkmcnt(0)")
        for i in range(4): A("v_mul_f32 %s, %s, %s" % (v(vG+i), v(vWt), v(vG+i)))
        for j in range(1, 4):
            for i in range(4): A("v_fmac_f32 %s, %s, %s" % (v(vG+i), v(vWt+j), v(vG+4*j+i)))
        A("ds_write_b128 v%d, %s offset:%d" % (vA2w, v(vG, 4), L_A2))
    else:
        pend = [vGm+1] + list(range(vG, vG+16))
        def fill(n):
            for _ in range(n):
                if pend: strip(pend.pop(0))
        strip(vGm); fill(2)
        A("v_max_f32_dpp v1, %s, %s %s%s" % (v(vGm), v(vGm), STEP[1], DPP)); fill(2)
        A("v_max_f32_dpp v1, v1, v1 %s%s" % (STEP[2], DPP)); fill(2)
        A("v_max_f32_dpp v1, v1, v1 %s%s\nv_mov_b32 v3, v1" % (STEP[3], DPP)); fill(2)
        A("v_permlane16_swap_b32 v1, v3\nv_max_f32 v1, v1, v3\nv_mov_b32 v3, v1"); fill(2)
        A("v_permlane32_swap_b32 v1, v3\nv_max_f32 v1, v1, v3\nv_sub_f32 v1, %s, v1\nv_exp_f32 v1, v1" % v(vGm)); fill(1)
        for j in range(4):
            if bpo: A("ds_bpermute_b32 %s, v%d, v1 offset:%d" % (v(vWt+j), vBp, 16*j))
            else: A("v_add_u32 v3, %d, v%d\nds_bpermute_b32 %s, v3, v1" % (16*j, vBp, v(vWt+j)))
        A("v_mul_f32 %s, v1, %s" % (v(vRl), v(vGm+1))); fill(2)
        inrow("v_add_f32", vRl, (1,)); fill(2)
        inrow("v_add_f32", vRl, (2,)); fill(2)
        inrow("v_add_f32", vRl, (3,)); fill(9)
        A("v_mov_b32 v3, %s\ns_waitcnt lgkmcnt(3)" % v(vRl))
        for i in range(4): A("v_mul_f32 %s, %s, %s" % (v(vG+i), v(vWt), v(vG+i)))
        A("v_permlane16_swap_b32 %s, v3\nv_add_f32 %s, %s, v3\nv_mov_b32 v3, %s" % (v(vRl), v(vRl), v(vRl), v(vRl)))
        for j in range(1, 4):
            A("s_waitcnt lgkmcnt(%d)" % (3-j))
            for i in range(4): A("v_fmac_f32 %s, %s, %s" % (v(vG+i), v(vWt+j), v(vG+4*j+i)))
        A("ds_write_b128 v%d, %s offset:%d" % (vA2w, v(vG, 4), L_A2))
        A("v_permlane32_swap_b32 %s, v3\nv_add_f32 %s, %s, v3\nv_rcp_f32 %s, %s" % (v(vRl), v(vRl), v(vRl), v(vRl), v(vRl)))
    A("s_waitcnt lgkmcnt(0)\ns_barrier")
    for i in range(8): A("ds_read_b128 %s, v%d offset:%d" % (v(vX+4*i, 4), vA2r, L_A2 + A2S*i))
    for i in range(1, 8):
        A("s_waitcnt lgkmcnt(%d)" % (7-i))
        for e in range(4): A("v_add_f32 %s, %s, %s" % (v(vX+e), v(vX+e), v(vX+4*i+e)))
    for e in range(0 if two == 4 else 4): A("v_mul_f32 %s, %s, %s" % (v(vX+e), v(vX+e), v(vRl)))
    for k in range(2): A("v_cvt_pk_bf16_f32 %s, %s, %s" % (v(vCf+k), v(vX+2*k), v(vX+2*k+1)))
    for k in range(2):
        for e in range(8): A("v_dot2c_f32_bf16 %s, %s, %s" % (v(vAc+e), v(vCf+k), v(vPm+8*k+e)))
    quads(vAc)
    for e in range(4): tagw(vAc+e, vTg)
    pub64("S", vAc, vP2, sP2, sLoc)
    STAMP(11)
    A("s_lshr_b32 s55, s2, 7\ns_or_b32 s55, s55, s%d\ns_cbranch_scc0 L_finisher" % sSW)
    STAMP_OUT(60)
    A("L_exit:\ns_endpgm")
    A("L_finisher:")
    if ff:
        A("s_bfe_u32 s55, s2, 0x40003\ns_lshl4_add_u32 s54, s55, s54\nv_lshl_add_u32 v21, v0, 8, s54")
        A("s_and_b32 s54, s2, 7\ns_lshl_b32 s54, s54, 13\ns_lshl4_add_u32 s54, s55, s54\ns_add_u32 s54, s54, %d\nv_lshl_add_u32 v20, v%d, 4, s54\ns_movk_i32 s55, 0x4000" % (WS_PF, vPo))
        srd(rB, sOUT, 1024)
        A("v_lshlrev_b32 %s, 16, %s\ns_mov_b32 s62, -1\ns_mov_b32 s63, 0" % (v(vXo), v(vXo)))
        poll("S", ["buffer_load_dwordx4 v[32:35], v20, %s, 0 offen sc1" % s_(rW, 4), "buffer_load_dwordx4 v[24:27], v21, %s, 0 offen sc1" % s_(rW, 4), "buffer_load_dwordx4 v[28:31], v21, %s, s55 offen sc1" % s_(rW, 4)], chk_tags(range(24, 36), 40, True), slp)
        STAMP(8)
        for e in range(4): strip(32+e)
        for e in range(8): strip(24+e)
        for e in range(2): A("v_cndmask_b32 %s, %s, %s, s[62:63]" % (v(32+e), v(34+e), v(32+e)))
        for e in range(4): A("v_add_f32 %s, %s, %s" % (v(24+e), v(24+e), v(28+e)))
        A("v_permlane16_swap_b32 v32, v33\nv_permlane32_swap_b32 v24, v26\nv_permlane32_swap_b32 v25, v27\nv_add_f32 v32, v32, v33")
        A("v_add_f32 v24, v24, v26\nv_add_f32 v25, v25, v27")
        inrow("v_add_f32", 32, (0,))
        A("v_permlane16_swap_b32 v24, v25\nv_add_f32 v24, v24, v25")
        inrow("v_add_f32", 32, (1,)); inrow("v_add_f32", 24, (0,))
        inrow("v_add_f32", 32, (2,)); inrow("v_add_f32", 24, (1,))
        inrow("v_add_f32", 32, (3,)); inrow("v_add_f32", 24, (2,))
        rb(32, 32)
        A("v_mul_f32 v22, 0x%x, v32" % (LOG2E | 0x80000000)); inrow("v_add_f32", 24, (3,))
        A("v_exp_f32 v22, v22"); rb(24, 24)
        A("v_add_f32 v22, 1.0, v22\nv_rcp_f32 v22, v22\nv_mul_f32 v32, v32, v22"); rb(32, 32)
        A("v_mul_f32 v24, v24, v32"); rb(24, 24)
    else:
        A("v_lshlrev_b32 v20, 2, v0\nds_read_b32 v50, v20 offset:%d" % L_G)
        A("s_bfe_u32 s55, s2, 0x40003\ns_lshl4_add_u32 s54, s55, s54\nv_lshl_add_u32 v21, v0, 8, s54\ns_movk_i32 s55, 0x4000")
        srd(rB, sOUT, 1024)
        A("v_lshlrev_b32 %s, 16, %s" % (v(vXo), v(vXo)))
        poll("S", ["buffer_load_dwordx4 v[24:27], v21, %s, 0 offen sc1" % s_(rW, 4), "buffer_load_dwordx4 v[28:31], v21, %s, s55 offen sc1" % s_(rW, 4)], chk_tags(range(24, 32), 40, True), slp)
        STAMP(8)
        for e in range(8): strip(24+e)
        for e in range(4): A("v_add_f32 %s, %s, %s" % (v(24+e), v(24+e), v(28+e)))
        reduce4(24); rb(24, 24)
        A("s_waitcnt lgkmcnt(0)\nv_mul_f32 v24, v24, v50"); rb(24, 24)
    A("v_add_f32 v24, v24, %s" % v(vXo)); rb(24, 24)
    A("s_mov_b32 exec_lo, 0x00010001\ns_mov_b32 exec_hi, 0x00010001")
    A("buffer_store_short_d16_hi v24, v%d, %s, 0 offen" % (vCol, s_(rB, 4)))
    A("s_cmp_lg_u32 s2, 0\ns_cbranch_scc1 L_fin2")
    A("s_mov_b64 exec, 1\nbuffer_store_dword %s, off, %s, 0 offset:%d\nL_fin2:" % (v(vTg), s_(rW, 4), WS_EPOCH))
    if amp:
        A("s_cmp_lg_u32 s2, 0\ns_cbranch_scc1 L_noamp\ns_memrealtime s[72:73]\ns_waitcnt lgkmcnt(0)\ns_sub_u32 s74, s72, s70\ns_sub_u32 s74, s74, 3800\ns_max_i32 s74, s74, 0\ns_min_i32 s74, s74, 5000\ns_mul_i32 s74, s74, %d\ns_add_u32 s74, s74, s72" % amp)
        A("L_amp:\ns_memrealtime s[72:73]\ns_waitcnt lgkmcnt(0)\ns_sub_u32 s75, s72, s74\ns_cmp_lt_i32 s75, 0\ns_cbranch_scc1 L_amp\nL_noamp:")
    STAMP(9)
    STAMP_OUT(60)
    A("s_endpgm")

    vXa, vXb, vXf, vXp, vAcc, vU, vWA, vWB, vPM = 2, 6, 14, 30, 38, 46, 64, 128, 192
    vOffA, vTa, vTb, vQd, vPub, vTs, vHc = 50, 54, 55, 56, 57, 58, 60
    sCol, sRh, sFsz, sIdx, sOob, sLocS = 48, 50, 54, 90, 91, 57
    A("L_service:")
    consts()
    A("v_mov_b32 v4, 0\nv_mov_b32 v5, 0\nv_mov_b32 v6, 1\nv_mov_b32 v7, 0\nv_mov_b32 v2, %d\nds_write_b128 v2, v[4:7]" % L_FLAG)
    A("v_lshrrev_b32 v1, 2, v0\nv_and_b32 v%d, 3, v0\nv_lshlrev_b32 v%d, 4, v0\nv_lshlrev_b32 v%d, 2, v1" % (vQd, vTa, vTb))
    A("v_lshlrev_b32 v%d, 14, v1\nv_lshl_add_u32 v%d, v%d, 4, v%d" % (vOffA, vOffA, vQd, vOffA))
    A("s_bfe_u32 s%d, s2, 0x10004\ns_bfe_u32 s68, s2, 0x10003\ns_and_b32 s55, s2, 7\ns_lshl1_add_u32 s55, s55, s68" % sRh)
    A("s_lshl_b32 s%d, s55, 6\ns_lshl_b32 s69, s%d, 10\ns_add_u32 s%d, s%d, s69\ns_lshl_b32 s69, s%d, 21\ns_add_u32 s%d, s%d, s69\ns_lshl_b32 s69, s%d, 9" % (sCol, sG, sCol, sCol, sRh, sCol, sCol, sRh))
    A("s_waitcnt lgkmcnt(0)")
    A("s_load_dword s%d, s[26:27], %d" % (sTag, WS_EPOCH))
    srd(rB, sX, 1024); srd(rA, sWQ, "0x400000")
    A("buffer_load_dwordx4 %s, v%d, %s, 0 offen" % (v(vXa, 4), vTa, s_(rB, 4)))
    for k in range(8): A("buffer_load_dword %s, v%d, %s, s69 offen offset:%d" % (v(vXb+k), vTb, s_(rB, 4), 64*k))
    def r1_loads(stride):
        for i in range(16):
            A("buffer_load_dwordx4 %s, v%d, %s, s%d offen nt" % (v(vWA+4*i, 4), vOffA, s_(rA, 4), sCol))
            if i < 15: A("s_add_u32 s%d, s%d, %d" % (sCol, sCol, stride*31 if i & 1 else stride))
    def r1_dots():
        for e in range(8): A("v_mov_b32 %s, 0" % v(vAcc+e))
        for k in range(8):
            A("s_waitcnt vmcnt(%d)" % (14 - 2*k))
            for d in range(4):
                A("v_perm_b32 %s, %s, %s, s%d" % (v(vPM+2*d), v(vWA+8*k+4+d), v(vWA+8*k+d), sPL))
                A("v_perm_b32 %s, %s, %s, s%d" % (v(vPM+2*d+1), v(vWA+8*k+4+d), v(vWA+8*k+d), sPH))
            for e in range(8): A("v_dot2c_f32_bf16 %s, %s, %s" % (v(vAcc+e), v(vXp+k), v(vPM+e)))
        reduce8(vAcc, (2, 3))
    r1_loads(8192)
    A("s_barrier")
    srd(rW, sWS, WS_SIZE)
    A("v_lshrrev_b32 v1, 5, v0\nv_bfe_u32 v%d, v0, 4, 1\nv_lshl_add_u32 v1, v1, 1, v%d\nv_lshl_add_u32 v%d, v%d, 2, v1" % (vPub, vPub, vPub, vQd))
    A("s_lshl_b32 s88, s%d, 13\ns_add_u32 s88, s88, %d\ns_add_u32 s89, s88, 4096" % (sG, WS_Q))
    A("s_lshl_b32 s62, s%d, 12\ns_add_u32 s62, s62, s88\ns_lshl_b32 s55, s55, 8\ns_add_u32 s62, s62, s55" % sRh)
    A("s_waitcnt vmcnt(24)")
    STAMP(1)
    for i in range(4): A("v_lshlrev_b32 %s, 16, %s\nv_and_b32 %s, 0xffff0000, %s" % (v(vXp+2*i), v(vXa+i), v(vXp+2*i+1), v(vXa+i)))
    for i in range(4): A("v_add_f32 %s, %s, %s" % (v(vXa+i), v(vXp+2*i), v(vXp+2*i+1)))
    A("v_add_f32 %s, %s, %s\nv_add_f32 %s, %s, %s\nv_add_f32 %s, %s, %s" % (v(vXa), v(vXa), v(vXa+1), v(vXa+2), v(vXa+2), v(vXa+3), v(vXa), v(vXa), v(vXa+2)))
    allred("v_add_f32", vXa, vTa, (0, 1, 2, 3))
    A("v_mul_f32 %s, 0x3b000000, %s" % (v(vXa), v(vXa)))
    for i in range(8): A("v_sub_f32 %s, %s, %s" % (v(vXp+i), v(vXp+i), v(vXa)))
    A("v_mul_f32 %s, %s, %s\nv_mul_f32 %s, %s, %s" % (v(vXa+1), v(vXp), v(vXp), v(vXa+2), v(vXp+1), v(vXp+1)))
    for i in range(2, 8): A("v_fmac_f32 %s, %s, %s" % (v(vXa+1+(i & 1)), v(vXp+i), v(vXp+i)))
    A("v_add_f32 %s, %s, %s" % (v(vXa+1), v(vXa+1), v(vXa+2)))
    A("s_waitcnt vmcnt(16)")
    for i in range(8): A("v_lshlrev_b32 %s, 16, %s\nv_and_b32 %s, 0xffff0000, %s" % (v(vXf+2*i), v(vXb+i), v(vXf+2*i+1), v(vXb+i)))
    allred("v_add_f32", vXa+1, vTa, (0, 1, 2, 3))
    rb(vXa, vXa)
    A("v_mul_f32 %s, 0x3b000000, %s" % (v(vXa+1), v(vXa+1))); rb(vXa+1, vXa+1)
    A("v_add_f32 %s, 0x%x, %s" % (v(vXa+1), EPS, v(vXa+1))); rb(vXa+1, vXa+1)
    A("v_sqrt_f32 %s, %s" % (v(vXa+1), v(vXa+1)))
    for i in range(16): A("v_sub_f32 %s, %s, %s" % (v(vXf+i), v(vXf+i), v(vXa)))
    rb(vXa+1, vXa+1)
    A("v_rcp_f32 %s, %s" % (v(vXa+1), v(vXa+1)))
    for i in range(16): rb(vXf+i, vXf+i)
    for i in range(16): A("v_mul_f32 %s, %s, %s" % (v(vXf+i), v(vXf+i), v(vXa+1)))
    for i in range(8): A("v_cvt_pk_bf16_f32 %s, %s, %s" % (v(vXp+i), v(vXf+2*i), v(vXf+2*i+1)))
    STAMP(2)
    r1_dots()
    A("s_waitcnt lgkmcnt(0)"); newtag()
    A("v_mov_b32 %s, %s\nv_mov_b32 %s, s%d\nv_mov_b32 %s, %s\nv_mov_b32 %s, s%d\nv_lshlrev_b32 v1, 4, v%d" % (v(vU), v(vAcc), v(vU+1), sTag, v(vU+2), v(vAcc+1), v(vU+3), sTag, vPub))
    A("s_mov_b64 exec, %s\nbuffer_store_dwordx4 %s, v1, %s, s62 offen sc1\ns_mov_b64 exec, -1" % (s_(sMask, 2), v(vU, 4), s_(rW, 4)))
    STAMP(3)
    A("s_and_b32 s%d, s2, 7\ns_lshl3_add_u32 s%d, s%d, s%d\ns_andn2_b32 s69, s%d, 1\ns_add_u32 s69, s69, s68" % (sIdx, sIdx, sG, sIdx, sIdx))
    A("s_bitcmp1_b32 s%d, 0\ns_cselect_b32 s60, s%d, s%d\ns_cselect_b32 s61, s%d, s%d" % (sIdx, sW3, sW1, sW3+1, sW1+1))
    A("s_cmp_lt_u32 s%d, 56\ns_cselect_b32 s%d, 1835008, 0\ns_cselect_b32 s%d, 0, 0x%x" % (sIdx, sFsz, sOob, OOB))
    srd(rA, 60, "s%d" % sFsz)
    A("v_lshrrev_b32 v1, 2, v0\nv_mul_u32_u24 v%d, 7168, v1\nv_lshl_add_u32 v%d, v%d, 4, v%d" % (vOffA, vOffA, vQd, vOffA))
    A("s_mul_i32 s%d, s%d, %d\ns_lshl_b32 s63, s69, 6\ns_add_u32 s%d, s%d, s63" % (sCol, sRh, 256*3584, sCol, sCol))
    r1_loads(3584); r1_dots()
    A("s_and_b32 s60, s%d, 1\ns_lshl1_add_u32 s60, s60, s%d\ns_lshl_b32 s60, s60, 14\ns_lshl_b32 s61, s69, 8\ns_add_u32 s60, s60, s61\ns_add_u32 s60, s60, %d\ns_add_u32 s60, s60, s%d" % (sIdx, sRh, WS_F1, sOob))
    A("v_lshl_add_u32 v1, v%d, 4, s60\nv_mov_b32 %s, %s\nv_mov_b32 %s, %s" % (vPub, v(vU), v(vAcc), v(vU+2), v(vAcc+1)))
    A("s_mov_b64 exec, %s\nbuffer_store_dwordx4 %s, v1, %s, 0 offen sc1\ns_mov_b64 exec, -1" % (s_(sMask, 2), v(vU, 4), s_(rW, 4)))
    A("; ---- gather q")
    A("v_lshlrev_b32 v1, 4, v0\nv_mov_b32 %s, s%d" % (v(vTs), sTag))
    poll("Q", ["buffer_load_dwordx4 %s, v1, %s, s%d offen offset:%d sc1" % (v(vWB+16*h+4*j, 4), s_(rW, 4), 88+h, j*1024) for h in range(2) for j in range(4)],
         chk_tags([vWB+2*i+1 for i in range(16)], vPM, False), slq)
    STAMP(4)
    for j in range(4):
        A("v_add_f32 %s, %s, %s\nv_add_f32 %s, %s, %s" % (v(vWB+4*j), v(vWB+4*j), v(vWB+16+4*j), v(vWB+4*j+2), v(vWB+4*j+2), v(vWB+16+4*j+2)))
    A("v_lshlrev_b32 v1, 2, v0")
    for j in range(4): A("v_cvt_pk_bf16_f32 %s, %s, %s" % (v(vWB+4*j), v(vWB+4*j), v(vWB+4*j+2)))
    for j in range(4): A("ds_write_b32 v1, %s offset:%d" % (v(vWB+4*j), L_Q + 256*j))
    A("v_mov_b32 v1, 1\nv_mov_b32 v2, 0\ns_waitcnt lgkmcnt(0)\nds_write_b32 v2, v1 offset:%d" % L_FLAG)
    A("s_getreg_b32 s61, hwreg(HW_REG_XCC_ID)\ns_and_b32 s61, s61, 7\ns_bitcmp1_b32 s61, 0\ns_cselect_b32 s66, %d, %d" % (r1 - bo, r1))
    A("s_lshl_b32 s61, s61, 12\ns_add_u32 s61, s61, %d\nv_lshl_add_u32 v5, v0, 8, s61\nv_lshl_add_u32 v6, v0, 7, s61" % WS_PR)
    A("s_lshr_b32 s60, s2, 3\ns_lshl_b32 s60, s60, 7\ns_add_u32 s60, s60, s61\nv_mov_b32 v4, s60\ns_and_b32 s67, s2, 7\ns_add_u32 s67, s67, s%d\ns_add_u32 s67, s67, 1\nv_mov_b32 v1, s67" % sTag)
    A("s_mov_b64 exec, 1\nbuffer_store_dword v1, v4, %s, 0 offen offset:124" % s_(rW, 4))
    A("s_mov_b32 s87, %d\ns_mov_b32 s%d, %d\ns_mov_b64 exec, 0xffff" % (pk0, sTO, 16*TIMEOUT))
    A("L_fb:\nds_read_b32 v1, v2 offset:%d\ns_lshl_b32 s88, s87, 2\ns_add_u32 s64, s88, %d\ns_waitcnt lgkmcnt(0)\nv_readfirstlane_b32 s89, v1" % (L_CNT, nth))
    A("s_cmp_ge_u32 s89, s64\ns_cbranch_scc1 L_fbgo\ns_sub_u32 s%d, s%d, 1\ns_cbranch_scc1 L_fbend\ns_sleep %d\ns_branch L_fb" % (sTO, sTO, slb))
    A("L_fbgo:\ns_cmp_lg_u32 s68, 0\ns_cbranch_scc1 L_nopm\ns_mov_b64 exec, 1\nbuffer_store_dword %s, v4, %s, s88 offen\ns_mov_b64 exec, 0xffff\nL_nopm:" % (v(vTs), s_(rW, 4)))
    A("buffer_load_dword v1, v5, %s, s88 offen sc1\ns_waitcnt vmcnt(0)" % s_(rW, 4))
    A("v_cmp_eq_u32 vcc, s%d, v1\ns_bcnt1_i32_b64 s89, vcc\ns_cmp_ge_u32 s89, s66\ns_cselect_b32 s88, 2, 1" % sTag)
    A("v_mov_b32 v1, s88\nds_write_b32 v2, v1 offset:%d\ns_add_u32 s87, s87, 1\ns_cmp_lt_u32 s87, %d\ns_cbranch_scc1 L_fb" % (L_MODE, pk1))
    A("L_fbend:")
    A("s_mov_b32 exec_lo, -1\ns_mov_b32 exec_hi, 0\nbuffer_load_dword v3, v6, %s, 0 offen offset:124 sc1\ns_mov_b64 exec, -1" % s_(rW, 4))
    A("s_lshr_b32 s55, s2, 3\ns_mul_i32 s60, s55, 448\ns_add_u32 s60, s60, %d\nv_min_u32 v1, 55, v0\nv_lshlrev_b32 v1, 3, v1" % WS_F1)
    for a in range(1, 4): A("s_add_u32 s%d, s60, %d" % (60+a, 16384*a))
    poll("H", ["buffer_load_dwordx2 %s, v1, %s, s%d offen sc1" % (v(vAcc+2*a, 2), s_(rW, 4), 60+a) for a in range(4)], chk_tags([vAcc+1, vAcc+3, vAcc+5, vAcc+7], vXf, False), slf)
    A("s_mov_b32 exec_hi, 0\nv_cmp_eq_u32 vcc, s67, v3\ns_mov_b64 exec, -1\ns_cmp_eq_u32 vcc_lo, -1\ns_cselect_b32 s%d, %d, 0\nv_mov_b32 v3, s%d\nds_write_b32 v2, v3 offset:%d" % (sLocS, 0 if noloc else 1, sLocS, L_LOC))
    A("v_add_f32 %s, %s, %s\nv_add_f32 %s, %s, %s" % (v(vU), v(vAcc), v(vAcc+2), v(vU+1), v(vAcc+4), v(vAcc+6)))
    rb(vU, vU); rb(vU+1, vU+1)
    silu(vU, vTa)
    A("v_mul_f32 %s, %s, %s" % (v(vU), v(vU), v(vU+1))); rb(vU, vU)
    A("v_cmp_gt_u32 vcc, 56, v0\nv_cndmask_b32 %s, 0, %s, vcc" % (v(vU), v(vU)))
    A("v_and_b32 %s, 7, v0\nv_lshrrev_b32 %s, 3, v0\nv_lshl_add_u32 v1, %s, 3, %s\nv_lshlrev_b32 v1, 2, v1\nds_write_b32 v1, %s offset:%d" % (v(vTa), v(vTb), v(vTa), v(vTb), v(vU), L_G))
    A("v_lshlrev_b32 v1, 5, %s\ns_waitcnt lgkmcnt(0)\nds_read_b128 %s, v1 offset:%d\nds_read_b128 %s, v1 offset:%d" % (v(vTb), v(vXf, 4), L_G, v(vXf+4, 4), L_G+16))
    A("v_lshlrev_b32 %s, 4, %s\nv_lshl_add_u32 v%d, %s, 10, %s" % (v(vTa), v(vTa), vOffA, v(vTb), v(vTa)))
    srd(rB, sW2, 1835008)
    A("s_mul_i32 s60, s55, 57344\ns_and_b32 s54, s2, 7\ns_lshl_b32 s61, s54, 7\ns_add_u32 s60, s60, s61")
    for i in range(1, 7): A("s_add_u32 s%d, s60, %d" % (60+i, 8192*i))
    A("s_lshl_b32 s54, s54, 13\ns_add_u32 s54, s54, %d\ns_lshl_b32 s55, s55, 8\ns_add_u32 s55, s55, s54" % WS_PF)
    A("v_lshrrev_b32 v1, 5, v0\nv_lshl_add_u32 %s, v1, 3, %s\nv_lshlrev_b32 %s, 1, %s" % (v(vTa), v(vTa), v(vTa), v(vTa)))
    A("s_bfe_u32 s67, s2, 0x40003\ns_lshl4_add_u32 s54, s67, s54\nv_lshl_add_u32 %s, v0, 8, s54" % v(vTb))
    for i in range(4): A("v_mov_b32 %s, 0" % v(vWA+28+i))
    for e in range(8): A("v_mov_b32 %s, 0" % v(vAcc+e))
    A("s_waitcnt lgkmcnt(0)")
    for k in range(4): A("v_perm_b32 %s, %s, %s, s%d" % (v(vHc+k), v(vXf+2*k+1), v(vXf+2*k), sPH))
    if em:
        A("v_and_b32 v3, 3, v0\ns_lshl_b32 s67, s2, 9\ns_add_u32 s67, s67, %d\nv_lshl_add_u32 v4, v3, 7, s67\nv_lshlrev_b32 v3, 3, v3\nv_mov_b32 %s, %s\nv_mov_b32 %s, %s" % (WS_P1M, v(vU+2), v(vTs), v(vU+3), v(vTs)))
    if two == 4:
        A("v_mov_b32 v6, 0\nv_mov_b32 v7, 0\nds_write_b32 v2, v6 offset:%d\nds_write_b32 v2, v6 offset:%d" % (L_RDY, L_WF))
        A("v_and_b32 v5, 31, v0\ns_lshl_b32 s67, s%d, 7\ns_bfe_u32 s88, s2, 0x20003\ns_add_u32 s67, s67, s88\ns_lshl_b32 s67, s67, 7\ns_add_u32 s67, s67, %d\nv_lshl_add_u32 v6, v5, 9, s67\nv_lshlrev_b32 v5, 2, v5\ns_waitcnt lgkmcnt(0)" % (sG, WS_P1M))
    STAMP(5)
    for _ in range(7): A("s_barrier")
    ldswait("lt", L_CNT2, lt, 2, 1)
    STAMP(6)
    def send_ml():
        A("; (m, l) of the four heads go out ahead of the partial sums")
        for w in range(4): A("ds_read_b64 %s, v3 offset:%d" % (v(vXf+2*w, 2), L_ML + 32*w))
        A("s_waitcnt lgkmcnt(0)\nv_max3_f32 %s, %s, %s, %s\nv_max_f32 %s, %s, %s" % (v(vU), v(vXf), v(vXf+2), v(vXf+4), v(vU), v(vU), v(vXf+6)))
        strip(vU)
        for w in range(4): A("v_sub_f32 %s, %s, %s" % (v(vXf+2*w), v(vXf+2*w), v(vU)))
        tagw(vU, vTs)
        for w in range(4): A("v_exp_f32 %s, %s" % (v(vXf+2*w), v(vXf+2*w)))
        A("v_mul_f32 %s, %s, %s" % (v(vU+1), v(vXf), v(vXf+1)))
        for w in range(1, 4): A("v_fmac_f32 %s, %s, %s" % (v(vU+1), v(vXf+2*w), v(vXf+2*w+1)))
        tagw(vU+1, vTs)
        A("s_mov_b64 exec, 15\nbuffer_store_dwordx4 %s, v4, %s, 0 offen sc1\ns_mov_b64 exec, -1" % (v(vU, 4), s_(rW, 4)))
    if em == 1: send_ml()
    vM1 = vWB
    def m_load(): A("buffer_load_dwordx4 %s, v6, %s, 0 offen sc1" % (v(vM1, 4), s_(rW, 4)))
    def m_check():
        chk_tags(range(vM1, vM1+4), vM1+4, True)()
        A("s_nor_b32 s88, vcc_lo, vcc_hi\nv_mov_b32 v1, s88\nds_write_b32 v2, v1 offset:%d\ns_or_b32 s88, vcc_lo, vcc_hi" % L_RDY)
    if two == 4 and pe: m_load()
    for i in range(7): A("buffer_load_dwordx4 %s, v%d, %s, s%d offen nt" % (v(vWA+4*i, 4), vOffA, s_(rB, 4), 60+i))
    if two == 4 and pe == 2:
        A("s_waitcnt vmcnt(7)"); m_check()
    A("s_barrier")
    if two == 4 and pe == 1:
        A("s_waitcnt vmcnt(7)"); m_check()
    if em == 2: send_ml()
    for k in range(4):
        A("s_waitcnt vmcnt(%d)" % (max(0, 5 - 2*k) + (1 if em == 2 else 0)))
        for d in range(4):
            A("v_perm_b32 %s, %s, %s, s%d" % (v(vPM+2*d), v(vWA+8*k+4+d), v(vWA+8*k+d), sPL))
            A("v_perm_b32 %s, %s, %s, s%d" % (v(vPM+2*d+1), v(vWA+8*k+4+d), v(vWA+8*k+d), sPH))
        for e in range(8): A("v_dot2c_f32_bf16 %s, %s, %s" % (v(vAcc+e), v(vHc+k), v(vPM+e)))
    quads(vAcc)
    for e in range(4): tagw(vAcc+e, vTs)
    pub64("F", vAcc, vTa, 55, sLocS)
    STAMP(7)
    if two == 4:
        A("; ---- (m, l) of the 32 producers of head w>>3: tell the stream waves which have arrived, then hand them the merge weights")
        if pe: A("s_cmp_eq_u32 s88, 0\ns_cbranch_scc1 L_gotM\ns_mov_b32 exec_lo, s88\ns_mov_b32 exec_hi, s88")
        A("s_mov_b32 s%d, %d\nL_pollM:" % (sTO, TIMEOUT)); m_load()
        A("s_sub_u32 s%d, s%d, 1\ns_cbranch_scc1 L_gotM\ns_waitcnt vmcnt(0)" % (sTO, sTO))
        m_check(); A("s_mov_b32 exec_lo, s88\ns_mov_b32 exec_hi, s88")
        if slm: A("s_cbranch_scc0 L_gotM\ns_sleep %d\ns_branch L_pollM" % slm)
        else: A("s_cbranch_scc1 L_pollM")
        A("L_gotM:\ns_mov_b64 exec, -1\ns_waitcnt vmcnt(0)")
        strip(vM1); strip(vM1+1)
        A("v_max_f32_dpp v1, %s, %s %s%s" % (v(vM1), v(vM1), STEP[0], DPP))
        inrow("v_max_f32", 1, (1, 2, 3))
        A("v_mov_b32 v3, v1\nv_permlane16_swap_b32 v1, v3\nv_max_f32 v1, v1, v3\nv_sub_f32 v1, %s, v1\nv_exp_f32 v1, v1\nv_mul_f32 v3, v1, %s" % (v(vM1), v(vM1+1)))
        inrow("v_add_f32", 3, (0, 1, 2, 3))
        A("v_mov_b32 v7, v3\nv_permlane16_swap_b32 v3, v7\nv_add_f32 v3, v3, v7\nv_rcp_f32 v3, v3\nv_mul_f32 v1, v1, v3\nv_mov_b32 v3, 1")
        A("ds_write_b32 v5, v1 offset:%d\nds_write_b32 v2, v3 offset:%d" % (L_WT, L_WF))
    if not ff:
        A("s_cmp_ge_u32 s2, 128\ns_cbranch_scc1 L_sdone")
        for e in range(4): A("v_mov_b32 %s, 0" % v(vXf+e))
        A("s_mov_b32 exec_hi, 0")
        poll("F", ["buffer_load_dwordx4 %s, %s, %s, 0 offen sc1" % (v(vXf, 4), v(vTb), s_(rW, 4))], chk_tags(range(vXf, vXf+4), vXf+4, True), slp)
        for e in range(4): strip(vXf+e)
        reduce4(vXf); rb(vXf, vXf); silu(vXf, vTa)
        A("v_lshlrev_b32 v1, 2, v0\nds_write_b32 v1, %s offset:%d\ns_waitcnt lgkmcnt(0)\ns_barrier" % (v(vXf), L_G))
    STAMP(8)
    A("L_sdone:")
    STAMP_OUT(128)
    A("s_endpgm")
    body, nn = hz.fix(L)
    body.append(""".section .rodata,"a"
.p2align 6
.amdhsa_kernel %s
  .amdhsa_next_free_vgpr 256
  .amdhsa_next_free_sgpr 100
  .amdhsa_accum_offset 256
  .amdhsa_group_segment_fixed_size 0
  .amdhsa_kernarg_size 96
  .amdhsa_user_sgpr_count 2
  .amdhsa_user_sgpr_kernarg_segment_ptr 1
  .amdhsa_system_sgpr_workgroup_id_x 1
  .amdhsa_float_denorm_mode_32 3
.end_amdhsa_kernel""" % KN)
    return "\n".join(body) + "\n"
if __name__ == "__main__":
    from build import build
    out = []
    for spec in sys.argv[1:]:
        kw = {}
        for kv in spec.split(","):
            if not kv or "=" not in kv: continue
            k, x = kv.split("=")
            kw[k] = int(x) if x.lstrip("-").isdigit() else x
        name = "g_" + spec.replace(",", "_").replace("=", "") + ".s"
        open(name, "w").write(gen(**kw)); build(name); out.append(name)
    print(" ".join(out))
```
